```python
import torch

def _softmax(x, axis=-1):
    return torch.softmax(x, dim=axis)
def _gelu(x):
    return torch.nn.functional.gelu(x, approximate="tanh")
def _silu(x):
    return torch.nn.functional.silu(x)
def _sigmoid(x):
    return torch.sigmoid(x)
def _layernorm(x, axis=-1, eps=1e-5):
    m = x.mean(dim=axis, keepdim=True)
    v = x.var(dim=axis, keepdim=True, unbiased=False)
    return (x - m) / torch.sqrt(v + eps)
def _scatter_add(tgt, idx, src, axis=0):
    return tgt.clone().index_add_(axis, idx, src)
def _segment_sum(src, seg, n):
    out = torch.zeros((n,) + src.shape[1:], dtype=src.dtype)
    return out.index_add_(0, seg, src)
def _pad(x, pw):
    flat = tuple(v for pair in reversed(pw) for v in pair)
    return torch.nn.functional.pad(x, flat)

kernel_name = 'gated_mix__sliding_block_cached__mixer_channel_mlp__decode'

def setup_inputs():

    _w = (lambda a: (lambda t: t.to(torch.bfloat16) if t.is_floating_point() else t)(torch.as_tensor(a)))
    def _A_setup():
        B, Sq, D = 1, 1, 576
        Hq, Hkv, Sk, Dh = 32, 16, 32768, 128
        assert Hq % Hkv == 0, (Hq, Hkv)
        return {
            "x": _w((lambda *s: torch.randn(*s, dtype=torch.bfloat16) * 0.05)(B, Sq, D)),
            "k_cache": _w((lambda *s: torch.randn(*s, dtype=torch.bfloat16) * 6.4)(B, Hkv, Sk, Dh)),
            "v_cache": _w((lambda *s: torch.randn(*s, dtype=torch.bfloat16) * 0.4)(B, Hkv, Sk, Dh)),
            "wq": _w((lambda *s: torch.randn(*s, dtype=torch.bfloat16) * 6.4)(D, Hq * Dh) * (D ** -0.5)),
            "wo": _w((lambda *s: torch.randn(*s, dtype=torch.bfloat16) * 0.4)(Hq * Dh, D) * ((Hq * Dh) ** -0.5)),
        }
    _A_in = _A_setup()

    def _B_setup():
        B, S, D, F = 1, 1, 576, 4608
        return {
            "x": _w((lambda *s: torch.randn(*s, dtype=torch.bfloat16) * 0.05)(B, S, D)),
            "w1": _w((lambda *s: torch.randn(*s, dtype=torch.bfloat16) * 1.6)(D, F) * (D ** -0.5)),
            "b1": _w((lambda *s: torch.randn(*s, dtype=torch.bfloat16) * 0.8)(F)),
            "w2": _w((lambda *s: torch.randn(*s, dtype=torch.bfloat16) * 0.05)(F, D) * (F ** -0.5)),
            "b2": _w((lambda *s: torch.randn(*s, dtype=torch.bfloat16) * 0.05)(D)),
        }
    _B_in = _B_setup()

    return {
        "A_x": _A_in["x"],
        "A_k_cache": _A_in["k_cache"],
        "A_v_cache": _A_in["v_cache"],
        "A_wq": _A_in["wq"],
        "A_wo": _A_in["wo"],
        "B_x": _B_in["x"],
        "B_w1": _B_in["w1"],
        "B_b1": _B_in["b1"],
        "B_w2": _B_in["w2"],
        "B_b2": _B_in["b2"],
        "gate_w": _w((lambda *s: torch.randn(*s, dtype=torch.bfloat16) * 0.05)(576) * 16.0),
    }

def reference(A_x, A_k_cache, A_v_cache, A_wq, A_wo, B_x, B_w1, B_b1, B_w2, B_b2, gate_w):
    def _A_ref(x, k_cache, v_cache, wq, wo):
        B, Sq, D = x.shape
        Hq, Dh = 32, 128
        Hkv, Sk = k_cache.shape[1], k_cache.shape[2]
        W = min(4096, max(256, Sk // 4))
        rep = Hq // Hkv
        q = (lambda x, *d: x.permute(*d))((x @ wq).reshape(B, Sq, Hq, Dh), 0, 2, 1, 3)
        k = (lambda x, n, axis: torch.repeat_interleave(x, n, dim=axis))(k_cache[:, :, Sk - W:, :], rep, axis=1)
        v = (lambda x, n, axis: torch.repeat_interleave(x, n, dim=axis))(v_cache[:, :, Sk - W:, :], rep, axis=1)
        scores = torch.einsum("bhqd,bhkd->bhqk", q, k) * (Dh ** -0.5)
        p = _softmax(scores, axis=-1)
        o = torch.einsum("bhqk,bhkd->bhqd", p, v)
        return (lambda x, *d: x.permute(*d))(o, 0, 2, 1, 3).reshape(B, Sq, Hq * Dh) @ wo

    def _B_ref(x, w1, b1, w2, b2):
        y = _layernorm(x, axis=-1)
        h = _gelu(torch.einsum("bsd,df->bsf", y, w1) + b1)
        return torch.einsum("bsf,fd->bsd", h, w2) + b2

    x = A_x
    g = _sigmoid((x * gate_w).sum(-1, keepdims=True))
    a = _A_ref(x, A_k_cache, A_v_cache, A_wq, A_wo)
    b = _B_ref(x, B_w1, B_b1, B_w2, B_b2)
    return g * a + (1 - g) * b
```

```python
import re
KNAME = "gated_mix__sliding_block_cached__mixer_channel_mlp__decode_kernel"

HEADER_COMMENTS = """; Kernarg layout (112 bytes, pointers only, base s[0:1]):
;   0 A_x (576 bf16)   8 A_k_cache   16 A_v_cache   24 A_wq   32 A_wo   40 B_x (unused by the reference)
"""

_REG = re.compile(r"^(-|abs\()?([vsa])(?:(\d+)|\[(\d+):(\d+)\])\)?$")
def regs_of(tok):
    tok = tok.strip()
    if tok in ("vcc",): return {"vcc"}
    if tok in ("vcc_lo", "vcc_hi"): return {"vcc"}
    if tok in ("exec", "exec_lo", "exec_hi"): return {"exec"}
    m = _REG.match(tok)
    if not m: return set()
    k = m.group(2)
    if m.group(3) is not None:
        return {k + m.group(3)}
    return {k + str(i) for i in range(int(m.group(4)), int(m.group(5)) + 1)}

TRANS = ("v_exp_f32", "v_log_f32", "v_rcp_f32", "v_rsq_f32", "v_sqrt_f32", "v_sin_f32", "v_cos_f32")

class Ins:
    __slots__ = ("text", "op", "kind", "vw", "vr", "sw", "sr", "dpp", "trans", "srcC", "states", "stdata", "dotC")
    def __init__(self, text):
        self.text = text
        t = text.split(";")[0].strip()
        parts = t.split(None, 1)
        self.op = parts[0]
        ops = []
        rest = parts[1] if len(parts) > 1 else ""
        cur = ""; depth = 0
        for ch in rest:
            if ch == "[": depth += 1
            if ch == "]": depth -= 1
            if ch == "," and depth == 0:
                ops.append(cur.strip()); cur = ""
            else:
                cur += ch
        if cur.strip(): ops.append(cur.strip())
        mods = ""
        if ops:
            sp = ops[-1].split(None, 1)
            ops[-1] = sp[0]
            mods = sp[1] if len(sp) > 1 else ""
        op = self.op
        self.vw = set(); self.vr = set(); self.sw = set(); self.sr = set()
        self.dpp = False; self.trans = False; self.srcC = set(); self.states = 1; self.stdata = set(); self.dotC = set()
        if op.startswith("v_dot2c"): self.dotC = regs_of(ops[0])
        elif op.startswith("v_dot2"):
            ab = regs_of(ops[1]) | regs_of(ops[2])
            self.dotC = regs_of(ops[3]) - ab
        def split(rs):
            v = {r for r in rs if r[0] in "va" and r != "vcc"}
            return v, rs - v
        if op == "s_nop":
            self.kind = "nop"; self.states = int(ops[0], 0) + 1
        elif op.startswith("v_mfma"):
            self.kind = "mfma"
            self.vw = regs_of(ops[0])
            for o in ops[1:]: self.vr |= split(regs_of(o))[0]
            self.srcC = regs_of(ops[3])
        elif op.startswith("v_"):
            self.kind = "valu"
            self.dpp = "_dpp" in op or "quad_perm" in mods or "row_" in mods
            self.trans = any(op.startswith(x) for x in TRANS)
            d = regs_of(ops[0])
            dv, ds = split(d)
            self.vw |= dv; self.sw |= ds
            srcs = ops[1:]
            if op.startswith("v_permlane") and "swap" in op:
                self.vw |= regs_of(ops[1]); srcs = ops
            if op.startswith("v_fmac") or op.startswith("v_dot2c") or op.startswith("v_writelane") or self.dpp:
                srcs = ops
                if op.startswith("v_writelane"): srcs = ops[1:]
            if op.startswith("v_cmp") and not op.startswith("v_cmpx"):
                pass
            if op.startswith("v_cndmask") and len(ops) == 3:
                self.sr.add("vcc")
            for o in srcs:
                v, s = split(regs_of(o))
                self.vr |= v; self.sr |= s
        elif op.startswith("ds_"):
            self.kind = "ds"
            if "read" in op or "bpermute" in op or "swizzle" in op:
                self.vw = regs_of(ops[0])
                for o in ops[1:]: self.vr |= regs_of(o)
            else:
                for o in ops: self.vr |= regs_of(o)
        elif op.startswith("buffer_") or op.startswith("global_"):
            self.kind = "vmem"
            if "load" in op:
                self.vw = regs_of(ops[0])
                rest_ops = ops[1:]
            else:
                rest_ops = ops
                if op.startswith("buffer_store") and ("x3" in op or "x4" in op):
                    self.stdata = regs_of(ops[0])
            for o in rest_ops:
                v, s = split(regs_of(o))
                self.vr |= v; self.sr |= s
        elif op.startswith("s_"):
            self.kind = "salu"
            if ops and not op.startswith(("s_cmp", "s_cbranch", "s_branch", "s_waitcnt", "s_barrier", "s_endpgm", "s_bitcmp", "s_setprio", "s_sleep")):
                self.sw = regs_of(ops[0])
        else:
            self.kind = "other"

class Asm:
    def __init__(self, autonop=True):
        self.lines = []
        self.hist = []
        self.nlabel = 0
        self.autonop = autonop
        self.vm = []
        self.nops_added = 0
    def raw(self, s):
        self.lines.append(s)
    def comment(self, s):
        self.lines.append("    ; " + s)
    def __call__(self, s=""):
        for ln in s.split("\n"):
            ln = ln.strip()
            if not ln: continue
            if ln.startswith(";"):
                self.lines.append("    " + ln); continue
            self._emit(ln)
    def _need(self, ins):
        need = 0
        dist = 0
        for p in reversed(self.hist):
            if dist >= 20: break
            req = 0
            if p.kind == "valu":
                if ins.kind == "mfma" and (p.vw & ins.vr): req = max(req, 2)
                if ins.kind == "valu" and ins.dpp and (p.vw & ins.vr): req = max(req, 2)
                if ins.kind == "valu" and ins.op.startswith("v_permlane") and (p.vw & ins.vr): req = max(req, 2)
                if ins.kind == "valu" and ins.op.startswith(("v_readlane", "v_readfirstlane")) and (p.vw & ins.vr): req = max(req, 1)
                if p.trans and ins.kind in ("valu", "mfma", "ds", "vmem") and (p.vw & ins.vr): req = max(req, 1)
                if p.sw and ins.kind == "valu" and (p.sw & ins.sr): req = max(req, 2 if not ins.op.startswith(("v_readlane", "v_writelane")) else 4)
                if p.sw and ins.kind == "vmem" and (p.sw & ins.sr): req = max(req, 5)
                if p.sw and ins.kind == "salu": req = max(req, 1) if False else req
                if "exec" in p.sw and ins.kind in ("valu", "mfma"): req = max(req, 5)
                if p.op.startswith("v_dot2") and (p.vw & (ins.vr | ins.vw)):
                    if not (ins.op == p.op and (p.vw & ins.vr) <= ins.dotC): req = max(req, 3)
            if p.kind == "mfma":
                if ins.kind in ("valu", "ds", "vmem") and (p.vw & (ins.vr | ins.vw)): req = max(req, 8)
                if ins.kind == "mfma":
                    ab = ins.vr - ins.srcC
                    if p.vw & ab: req = max(req, 8)
                    if (p.vw & ins.srcC) and p.vw != ins.srcC: req = max(req, 6)
                    if (p.vw & ins.vw) and not (p.vw == ins.srcC): req = max(req, 8)
                if ins.kind == "valu" and (p.srcC & ins.vw): req = max(req, 3)
            if p.kind == "vmem" and p.stdata:
                if ins.kind == "valu" and (p.stdata & ins.vw): req = max(req, 2)
                elif ins.kind != "valu" and (p.stdata & ins.vw): req = max(req, 1)
            if req - dist > need: need = req - dist
            dist += p.states
        return need
    def _emit(self, ln):
        ins = Ins(ln)
        if self.autonop:
            n = self._need(ins)
            if n > 0:
                self.nops_added += n
                while n > 0:
                    k = min(n, 16)
                    nop = Ins("s_nop %d" % (k - 1))
                    self.lines.append("    s_nop %d" % (k - 1))
                    self.hist.append(nop)
                    n -= k
        self.lines.append("    " + ln)
        self.hist.append(ins)
        if len(self.hist) > 64: self.hist = self.hist[-40:]
    def label(self, name, keep_hist=True):
        self.lines.append(name + ":")
        if not keep_hist: self.hist = []
    def newlabel(self, p="L"):
        self.nlabel += 1
        return "%s_%d" % (p, self.nlabel)
    def vm_reset(self, lst=None):
        self.vm = list(lst or [])
    def vm_issue(self, name, text):
        self(text)
        self.vm.append(name)
        assert len(self.vm) <= 63, "too many outstanding"
    def vm_wait(self, name):
        if name not in self.vm:
            return
        i = self.vm.index(name)
        n = len(self.vm) - 1 - i
        self("s_waitcnt vmcnt(%d)" % n)
        self.vm = self.vm[i + 1:]
    def vm_wait_all(self):
        self("s_waitcnt vmcnt(0)")
        self.vm = []
    def text(self):
        return "\n".join(self.lines) + "\n"

def wrap(body, grid, block, lds, vgpr, sgpr=102, accum=None, agpr=0, extra_header=""):
    if accum is None:
        accum = (vgpr + 3) // 4 * 4
    nfv = accum + agpr if agpr else vgpr
    s = extra_header + HEADER_COMMENTS
    s += "; @launch grid=(%d,1,1) block=(%d,1,1) lds=%d\n" % (grid, block, lds)
    s += '.amdgcn_target "amdgcn-amd-amdhsa--gfx950"\n.text\n.globl %s\n.p2align 8\n.type %s,@function\n%s:\n' % (KNAME, KNAME, KNAME)
    s += body
    s += """.section .rodata,"a"
.p2align 6
.amdhsa_kernel %s
  .amdhsa_next_free_vgpr %d
  .amdhsa_next_free_sgpr %d
  .amdhsa_accum_offset %d
  .amdhsa_group_segment_fixed_size 0
  .amdhsa_kernarg_size 112
  .amdhsa_user_sgpr_count 2
  .amdhsa_user_sgpr_kernarg_segment_ptr 1
  .amdhsa_system_sgpr_workgroup_id_x 1
  .amdhsa_float_denorm_mode_32 3
.end_amdhsa_kernel
""" % (KNAME, nfv, sgpr, accum)
    return s
```

```python
import sys, struct, math
from asmlib import *

def fbits(x):
    return struct.unpack("<I", struct.pack("<f", x))[0]
def flit(x):
    return "0x%08x" % fbits(x)

EPOCH = 0
QS = 0x10000
HS = 0x40000
OS = 0x80000
ML = 0x100000
PS = 0x200000
STAMP = 0x1000000
QP, HP, XS, ST, QB, MX, LS, HB, OB, FP, OP = 0, 4608, 8704, 9984, 10048, 10560, 10624, 10688, 10816, 10880, 11264
LDS_BYTES = 19456
OOB = "0x80000000"
CS = math.log2(math.e) / math.sqrt(128.0)
LOG2E = math.log2(math.e)

sW, sH, sC, sRB, sCB = 3, 4, 5, 6, 7
sT0, sT1, sT2, sT3 = 8, 9, 10, 11
sTAG, sCNT = 96, 97
SRD = dict(K=44, V=48, wq=52, wo=56, w1=60, w2=64, ws=68, x=72, g=76, b1=80, b2=84, out=88)
PTR = dict(x=16, K=18, V=20, wq=22, wo=24, w1=28, b1=30, w2=32, b2=34, g=36, out=38, ws=42)
SIZE = dict(x=1152, K=16*32768*256, V=16*32768*256, wq=576*8192, wo=4096*1152, w1=576*9216, b1=9216, w2=4608*1152,
            b2=1152, g=1152, out=1152, ws=512 << 20)
def srd(n): return "s[%d:%d]" % (SRD[n], SRD[n] + 3)

T = [1, 2, 3, 4, 5, 6, 7, 8, 9]
M = 10
vOQ, vO1, vO2, vO2m, vOK, vOV, vLP, vRow, vTAG = 14, 15, 16, 17, 18, 19, 20, 21, 22
vZ = 23
ACC, ACC2 = 24, 28
WQ, W1 = 32, 40
WO, W2 = 32, 40
KR, VR, DR = 52, 84, 116
X = 148
vST = 159
def q(r, n=4): return "v[%d:%d]" % (r, r + n - 1)

def gen(W=3, nt="nt", nt_w="nt", stamps=False, ncons=72, cons0=184, pub="sc1", pol="sc1", extra_pump=0):
    a = Asm()
    mod = (" " + nt) if nt else ""
    modw = (" " + nt_w) if nt_w else ""
    pub = (" " + pub) if pub else ""
    pol = (" " + pol) if pol else ""
    nst = [0]
    def stamp(k):
        if stamps:
            a("s_memrealtime s[98:99]"); a("s_waitcnt lgkmcnt(0)"); a("v_writelane_b32 v%d, s98, %d" % (vST, k))
    def build_srd(n):
        a("s_mov_b32 s%d, s%d" % (SRD[n], PTR[n])); a("s_mov_b32 s%d, s%d" % (SRD[n] + 1, PTR[n] + 1))
    def exec_set(lo, hi):
        a("s_mov_b32 exec_lo, 0x%x" % lo); a("s_mov_b32 exec_hi, 0x%x" % hi)
    def exec_full():
        a("s_mov_b64 exec, -1")
    def prepA(dst, pp):
        for r in range(4): a("v_and_b32 v%d, v%d, v%d" % (dst + r, pp, M + r))
    def barrier():
        a("s_waitcnt lgkmcnt(0)"); a("s_barrier")
    def red45(op, v, t):
        a("v_mov_b32 v%d, v%d" % (t, v)); a("v_permlane16_swap_b32 v%d, v%d" % (v, t)); a("%s v%d, v%d, v%d" % (op, v, v, t))
        a("v_mov_b32 v%d, v%d" % (t, v)); a("v_permlane32_swap_b32 v%d, v%d" % (v, t)); a("%s v%d, v%d, v%d" % (op, v, v, t))
    def dppadd(op, d, s0, s1, ctl, rm="0xf", bm="0xf"):
        a("%s_dpp v%d, v%d, v%d %s row_mask:%s bank_mask:%s" % (op, d, s0, s1, ctl, rm, bm))
    def poll(tagregs, reissue, mask=None):
        top, ok = a.newlabel("L_poll"), a.newlabel("L_ok")
        a("s_movk_i32 s%d, 0x2000" % sCNT)
        a.label(top)
        a("v_cmp_eq_u32 vcc, s%d, v%d" % (sTAG, tagregs[0]))
        for t in tagregs[1:]:
            a("v_cmp_eq_u32 s[12:13], s%d, v%d" % (sTAG, t))
            a("s_and_b64 vcc, vcc, s[12:13]")
        if mask is not None:
            a("s_mov_b32 s12, 0x%x" % ((~mask) & 0xffffffff)); a("s_mov_b32 s13, 0x%x" % ((~mask >> 32) & 0xffffffff))
            a("s_or_b64 vcc, vcc, s[12:13]")
        a("s_cmp_eq_u64 vcc, -1")
        a("s_cbranch_scc1 %s" % ok)
        a("s_sub_u32 s%d, s%d, 1" % (sCNT, sCNT))
        a("s_cmp_eq_u32 s%d, 0" % sCNT)
        a("s_cbranch_scc1 %s" % ok)
        reissue()
        a("s_waitcnt vmcnt(0)")
        a("s_branch %s" % top)
        a.label(ok)

    a("s_cmp_ge_u32 s2, 256")
    a("s_cbranch_scc1 L_end")
    a("s_load_dwordx16 s[16:31], s[0:1], 0")
    a("s_load_dwordx8 s[32:39], s[0:1], 64")
    a("s_load_dwordx4 s[40:43], s[0:1], 96")
    if stamps:
        a("s_memrealtime s[98:99]")
    a("v_lshrrev_b32 v1, 6, v0")
    a("v_and_b32 v0, 63, v0")
    a("v_readfirstlane_b32 s%d, v1" % sW)
    a("s_and_b32 s%d, s2, 7" % sT0)
    a("s_bfe_u32 s%d, s2, 0x10003" % sT1)
    a("s_lshl_b32 s%d, s%d, 1" % (sH, sT0))
    a("s_add_u32 s%d, s%d, s%d" % (sH, sH, sT1))
    a("s_lshr_b32 s%d, s2, 4" % sC)
    a("s_lshr_b32 s%d, s%d, 2" % (sRB, sC))
    a("s_and_b32 s%d, s%d, 3" % (sCB, sC))
    for n in SRD:
        a("s_mov_b32 s%d, 0x%x" % (SRD[n] + 2, SIZE[n])); a("s_mov_b32 s%d, 0x20000" % (SRD[n] + 3))
    a("s_mul_i32 s92, s%d, 288" % sRB); a("s_lshl_b32 s%d, s%d, 5" % (sT0, sW)); a("s_add_u32 s92, s92, s%d" % sT0)
    a("s_lshl_b32 s93, s92, 12")
    a("s_lshl_b32 s%d, s%d, 9" % (sT0, sH)); a("s_add_u32 s93, s93, s%d" % sT0)
    a("s_lshl_b32 s%d, s%d, 7" % (sT0, sCB)); a("s_add_u32 s93, s93, s%d" % sT0)
    a("s_add_u32 s94, s93, 8192")
    a("v_lshrrev_b32 v%d, 3, v0" % vRow)
    a("v_and_b32 v1, 7, v0")
    a("v_lshlrev_b32 v2, 4, v1")
    a("v_lshl_add_u32 v%d, v%d, 14, v2" % (vOQ, vRow))
    a("v_lshlrev_b32 v3, 2, v%d" % vRow)
    a("v_mov_b32 v%d, 0" % vZ)
    if stamps: a("v_mov_b32 v%d, 0" % vST)
    a("v_mul_u32_u24 v4, 9216, v%d" % vRow); a("v_add_u32 v%d, v4, v2" % vO1)
    a("v_mul_u32_u24 v4, 1152, v%d" % vRow); a("v_add_u32 v%d, v4, v2" % vO2)
    a("v_mov_b32 v5, %s" % OOB)
    a("v_cmp_gt_u32 vcc, 16, v0")
    a("v_cndmask_b32 v%d, v5, v%d, vcc" % (vO2m, vO2))
    a("v_bfe_u32 v4, v0, 2, 2"); a("v_lshlrev_b32 v4, 8, v4"); a("v_lshrrev_b32 v6, 4, v0"); a("v_lshl_add_u32 v4, v6, 6, v4")
    a("v_and_b32 v7, 3, v0"); a("v_lshl_add_u32 v%d, v7, 4, v4" % vOK)
    a("v_lshlrev_b32 v%d, 4, v0" % vOV)
    a("v_and_b32 v4, 1, v0"); a("v_lshlrev_b32 v4, 4, v4"); a("v_mov_b32 v7, 0xffff"); a("v_lshlrev_b32 v4, v4, v7")
    a("v_lshrrev_b32 v7, 1, v1")
    for r in range(4):
        a("v_cmp_eq_u32 vcc, %d, v7" % r); a("v_cndmask_b32 v%d, 0, v4, vcc" % (M + r))
    a("v_lshrrev_b32 v4, 5, v0"); a("v_lshlrev_b32 v4, 8, v4"); a("v_lshl_add_u32 v4, v1, 5, v4")
    a("v_and_b32 v7, 1, v6"); a("v_lshl_add_u32 v4, v7, 4, v4")
    a("s_lshl_b32 s%d, s%d, 9" % (sT0, sW)); a("v_add_u32 v%d, s%d, v4" % (vLP, sT0))
    a("s_waitcnt lgkmcnt(0)")
    if stamps: a("v_writelane_b32 v%d, s98, 0" % vST)
    build_srd("ws"); build_srd("x"); build_srd("wq")
    a("s_cmp_eq_u32 s%d, 8" % sW)
    a("s_cbranch_scc1 L_role1")

    def q_phase():
        a("v_perm_b32 v1, v%d, v%d, s14" % (X, X))
        a("v_perm_b32 v2, v%d, v%d, s15" % (X, X))
        prepA(DR, 1); prepA(DR + 4, 2)
    def useful_exec(): exec_set(0x00ff00ff, 0xff00ff00)

    def read_tag():
        a("v_readfirstlane_b32 s%d, v%d" % (sT0, X + 1))
        a("s_mul_i32 s%d, s%d, 1664525" % (sTAG, sT0)); a("s_add_u32 s%d, s%d, 1013904223" % (sTAG, sTAG))
        a("v_mov_b32 v%d, s%d" % (vTAG, sTAG))

    def final_publish():
        d0, d1, d2, d3 = ACC, ACC + 1, ACC + 2, ACC + 3
        a("v_permlane32_swap_b32 v%d, v%d" % (d0, d2))
        a("v_permlane32_swap_b32 v%d, v%d" % (d1, d3))
        r0, r1 = X, X + 2
        dppadd("v_add_f32", r0, d2, d0, "row_ror:8", rm="0x3"); dppadd("v_add_f32", r0, d0, d2, "row_ror:8", rm="0xc")
        dppadd("v_add_f32", r1, d3, d1, "row_ror:8", rm="0x3"); dppadd("v_add_f32", r1, d1, d3, "row_ror:8", rm="0xc")
        a("v_mov_b32 v%d, v%d" % (X + 1, vTAG)); a("v_mov_b32 v%d, v%d" % (X + 3, vTAG))
        a("v_and_b32 v1, 7, v0"); a("v_lshlrev_b32 v1, 6, v1"); a("v_bfe_u32 v2, v0, 4, 1"); a("v_lshl_add_u32 v1, v2, 5, v1")
        a("v_lshrrev_b32 v2, 5, v0"); a("v_lshl_add_u32 v1, v2, 4, v1")
        a("s_mul_i32 s%d, s2, 4608" % sT0); a("s_lshl_b32 s%d, s%d, 9" % (sT1, sW)); a("s_add_u32 s%d, s%d, s%d" % (sT0, sT0, sT1))
        a("s_add_u32 s%d, s%d, 0x%x" % (sT0, sT0, PS))
        useful_exec()
        a.vm_issue("PSst", "buffer_store_dwordx4 %s, v1, %s, s%d offen%s" % (q(X), srd("ws"), sT0, pub))
        exec_full()

    def final_mfmas_w2():
        a("v_lshlrev_b32 v9, 2, v%d" % vRow)
        for rb in range(3): a("ds_read_b32 v%d, v9 offset:%d" % (1 + rb, HB + 32 * rb))
        a("s_waitcnt lgkmcnt(0)")
        for rb in range(3): prepA(KR + 4 * rb, 1 + rb)
        for rb in range(3):
            a.vm_wait("W2_%d" % rb)
            yield rb
            a("v_mfma_f32_16x16x32_bf16 %s, %s, %s, %s" % (q(ACC), q(KR + 4 * rb), q(W2 + 4 * rb), "0" if rb == 0 else q(ACC)))
    def final_mfmas_wo():
        a("v_lshlrev_b32 v9, 2, v%d" % vRow)
        for rb in range(2): a("ds_read_b32 v%d, v9 offset:%d" % (1 + rb, OB + 32 * rb))
        a("s_waitcnt lgkmcnt(0)")
        for rb in range(2): prepA(KR + 12 + 4 * rb, 1 + rb)
        for rb in range(2):
            a.vm_wait("WO_%d" % rb)
            a("v_mfma_f32_16x16x32_bf16 %s, %s, %s, %s" % (q(ACC), q(KR + 12 + 4 * rb), q(WO + 4 * rb), q(ACC)))

    def w2wo_soff():
        a("s_mul_i32 s24, s2, %d" % (18 * 1152)); a("s_lshl_b32 s%d, s%d, 7" % (sT0, sW)); a("s_add_u32 s24, s24, s%d" % sT0)
        a("s_add_u32 s25, s24, %d" % (8 * 1152)); a("s_add_u32 s26, s25, %d" % (8 * 1152))
        a("s_lshl_b32 s27, s%d, 8" % sH); a("s_lshl_b32 s%d, s%d, 4" % (sT1, sC)); a("s_add_u32 s27, s27, s%d" % sT1)
        a("s_mul_i32 s27, s27, 1152"); a("s_add_u32 s27, s27, s%d" % sT0); a("s_add_u32 s28, s27, %d" % (8 * 1152))
    def ld_w2(i): return "buffer_load_dwordx4 %s, v%d, %s, s%d offen%s" % (q(W2 + 4 * i), vO2 if i < 2 else vO2m, srd("w2"), 24 + i, modw)
    def ld_wo(i): return "buffer_load_dwordx4 %s, v%d, %s, s%d offen%s" % (q(WO + 4 * i), vO2, srd("wo"), 27 + i, modw)

    a.vm_reset()
    a.vm_issue("EP", "buffer_load_dword v%d, v%d, %s, 0 offen sc1" % (X + 1, vZ, srd("ws")))
    a.vm_issue("XP", "buffer_load_dword v%d, v3, %s, s92 offen" % (X, srd("x")))
    seq = []
    def add(name, pre, text): seq.append((name, pre, text))
    for i in range(2):
        add("WQ%d" % i, [], "buffer_load_dwordx4 %s, v%d, %s, s%d offen%s" % (q(WQ + 4 * i), vOQ, srd("wq"), 93 + i, modw))
    for i in range(3):
        add("W1_%d" % i, [], "buffer_load_dwordx4 %s, v%d, %s, s%d offen%s" % (q(W1 + 4 * i), vO1, srd("w1"), 16 + i, modw))
    for i in range(8):
        add("K%d" % i, ["s_add_u32 s%d, s19, %d" % (sT3, 8192 * i)], "buffer_load_dwordx4 %s, v%d, %s, s%d offen%s" % (q(KR + 4 * i), vOK, srd("K"), sT3, mod))
    qg_text = "buffer_load_dwordx4 %s, v%d, %s, s20 offen%s" % (q(X + 4), X + 8, srd("ws"), pol)
    add("QG", [], qg_text)
    for i in range(8):
        add("V%d" % i, ["s_add_u32 s%d, s19, %d" % (sT3, 8192 * i)], "buffer_load_dwordx4 %s, v%d, %s, s%d offen%s" % (q(VR + 4 * i), vOV, srd("V"), sT3, mod))
    for i in range(3): add("W2_%d" % i, [], ld_w2(i))
    for i in range(2): add("WO_%d" % i, [], ld_wo(i))
    names = [s[0] for s in seq]
    issued = [0]
    def pump(upto):
        while issued[0] <= upto and issued[0] < len(seq):
            n, pre, t = seq[issued[0]]
            for p in pre: a(p)
            a.vm_issue(n, t)
            issued[0] += 1
    def consume(name, extra=0):
        k = names.index(name)
        pump(k)
        a.vm_wait(name)
        pump(k + W + extra)

    pump(1)
    build_srd("w1"); build_srd("K"); build_srd("V"); build_srd("w2"); build_srd("wo")
    build_srd("b2"); build_srd("out")
    a("s_mul_i32 s21, s2, 911"); a("s_lshr_b32 s21, s21, 16")
    a("s_mul_i32 s%d, s21, 72" % sT0); a("s_sub_u32 s22, s2, s%d" % sT0)
    a("s_cmp_lt_u32 s21, 3"); a("s_cselect_b32 s23, s21, 0")
    a("s_cselect_b32 s%d, 0, 1" % sT2)
    a("s_mul_i32 s16, s23, 192"); a("s_mul_i32 s%d, s%d, 24" % (sT0, sW)); a("s_add_u32 s16, s16, s%d" % sT0)
    a("s_lshl_b32 s29, s16, 1")
    a("s_mul_i32 s16, s16, 9216"); a("s_lshl_b32 s%d, s22, 7" % sT0); a("s_add_u32 s16, s16, s%d" % sT0)
    a("s_add_u32 s17, s16, %d" % (8 * 9216)); a("s_add_u32 s18, s17, %d" % (8 * 9216))
    a("s_lshl_b32 s%d, s%d, 31" % (sT2, sT2)); a("v_or_b32 v%d, s%d, v%d" % (vO1, sT2, vO1))
    a("s_lshl_b32 s19, s%d, 23" % sH); a("s_add_u32 s19, s19, 7340032"); a("s_lshl_b32 s%d, s%d, 16" % (sT0, sC)); a("s_add_u32 s19, s19, s%d" % sT0)
    a("s_lshl_b32 s%d, s%d, 10" % (sT0, sW)); a("s_add_u32 s19, s19, s%d" % sT0)
    a("s_lshl_b32 s20, s%d, 13" % sH); a("s_lshl_b32 s%d, s%d, 8" % (sT0, sW)); a("s_add_u32 s20, s20, s%d" % sT0); a("s_add_u32 s20, s20, 0x%x" % QS)
    a("v_lshrrev_b32 v4, 4, v0"); a("v_lshlrev_b32 v4, 11, v4"); a("v_and_b32 v5, 15, v0"); a("v_lshl_add_u32 v%d, v5, 4, v4" % (X + 8))
    w2wo_soff()
    pump(W - 1 + 1)
    a("s_mov_b32 s14, 0x01000100"); a("s_mov_b32 s15, 0x03020302")
    a.vm_wait("XP")
    read_tag()
    q_phase()
    consume("WQ0")
    a("v_mfma_f32_16x16x32_bf16 %s, %s, %s, 0" % (q(ACC), q(DR), q(WQ)))
    consume("WQ1")
    stamp(1)
    a("v_mfma_f32_16x16x32_bf16 %s, %s, %s, %s" % (q(ACC), q(DR + 4), q(WQ + 4), q(ACC)))
    useful_exec()
    a("ds_write_b128 v%d, %s offset:%d" % (vLP, q(ACC), QP))
    exec_full()
    barrier()
    stamp(2)
    a("v_lshl_add_u32 v1, v%d, 1, s29" % vRow)
    for i in range(3): a("ds_read_u16 v%d, v1 offset:%d" % (2 + i, XS + 16 * i))
    a("ds_read_b64 v[6:7], v%d offset:%d" % (vZ, ST))
    a("s_waitcnt lgkmcnt(0)")
    for i in range(3):
        a("v_lshlrev_b32 v%d, 16, v%d" % (2 + i, 2 + i))
        a("v_sub_f32 v%d, v%d, v6" % (2 + i, 2 + i))
        a("v_mul_f32 v%d, v%d, v7" % (2 + i, 2 + i))
        a("v_cvt_pk_bf16_f32 v%d, v%d, v%d" % (2 + i, 2 + i, 2 + i))
        prepA(DR + 4 * i, 2 + i)
    for i in range(3):
        consume("W1_%d" % i)
        a("v_mfma_f32_16x16x32_bf16 %s, %s, %s, %s" % (q(ACC2), q(DR + 4 * i), q(W1 + 4 * i), "0" if i == 0 else q(ACC2)))
    useful_exec()
    a("ds_write_b128 v%d, %s offset:%d" % (vLP, q(ACC2), HP))
    exec_full()
    barrier()
    stamp(3)
    for i in range(8): consume("K%d" % i)
    stamp(4)
    consume("QG")
    stamp(5)
    poll([X + 5, X + 7], lambda: a(qg_text))
    stamp(6)
    qa, qb = X + 4, X + 6
    a("v_permlane32_swap_b32 v%d, v%d" % (qa, qb)); a("v_add_f32 v%d, v%d, v%d" % (qa, qa, qb))
    a("v_mov_b32 v%d, v%d" % (qb, qa)); a("v_permlane16_swap_b32 v%d, v%d" % (qa, qb)); a("v_add_f32 v%d, v%d, v%d" % (qa, qa, qb))
    a("v_cvt_pk_bf16_f32 v%d, v%d, v%d" % (qa, qa, qa))
    a("v_and_b32 v1, 15, v0"); a("v_lshlrev_b32 v1, 2, v1"); a("v_lshrrev_b32 v2, 5, v0"); a("v_lshl_add_u32 v1, v2, 1, v1")
    a("s_lshl_b32 s%d, s%d, 6" % (sT0, sW)); a("v_add_u32 v1, s%d, v1" % sT0)
    a("ds_write_b16 v1, v%d offset:%d" % (qa, QB))
    barrier()
    a("v_bfe_u32 v1, v0, 3, 1"); a("v_lshlrev_b32 v1, 8, v1"); a("v_lshrrev_b32 v2, 4, v0"); a("v_lshl_add_u32 v1, v2, 6, v1")
    a("v_and_b32 v2, 3, v0"); a("v_lshl_add_u32 v1, v2, 4, v1")
    a("ds_read_b128 %s, v1 offset:%d" % (q(ACC), QB))
    a("s_waitcnt lgkmcnt(0)")
    for i in range(8):
        a("v_mfma_f32_16x16x32_bf16 %s, %s, %s, 0" % (q(DR + 4 * i), q(KR + 4 * i), q(ACC)))
    pump(issued[0] - 1 + extra_pump)
    S = [KR + i for i in range(8)]
    a("s_nop 7")
    for i in range(8): a("v_mov_b32_dpp v%d, v%d quad_perm:[0,0,0,0] row_mask:0xf bank_mask:0xf" % (S[i], DR + 4 * i))
    for r in range(1, 4):
        for i in range(8): dppadd("v_add_f32", S[i], DR + 4 * i + r, S[i], "quad_perm:[%d,%d,%d,%d]" % (r, r, r, r))
    a("v_max3_f32 v1, v%d, v%d, v%d" % (S[0], S[1], S[2])); a("v_max3_f32 v2, v%d, v%d, v%d" % (S[3], S[4], S[5]))
    a("v_max3_f32 v1, v1, v%d, v%d" % (S[6], S[7])); a("v_max_f32 v1, v1, v2")
    red45("v_max_f32", 1, 2)
    a("v_bfe_u32 v3, v0, 3, 1"); a("v_lshlrev_b32 v3, 5, v3"); a("s_lshl_b32 s%d, s%d, 2" % (sT0, sW)); a("v_add_u32 v4, s%d, v3" % sT0)
    exec_set(0x101, 0)
    a("ds_write_b32 v4, v1 offset:%d" % MX)
    exec_full()
    barrier()
    stamp(7)
    a("ds_read_b128 v[%d:%d], v3 offset:%d" % (ACC, ACC + 3, MX)); a("ds_read_b128 v[%d:%d], v3 offset:%d" % (ACC2, ACC2 + 3, MX + 16))
    a("s_waitcnt lgkmcnt(0)")
    a("v_max3_f32 v1, v%d, v%d, v%d" % (ACC, ACC + 1, ACC + 2)); a("v_max3_f32 v2, v%d, v%d, v%d" % (ACC + 3, ACC2, ACC2 + 1))
    a("v_max3_f32 v1, v1, v%d, v%d" % (ACC2 + 2, ACC2 + 3)); a("v_max_f32 v1, v1, v2")
    a("s_mov_b32 s14, %s" % flit(CS))
    a("v_mul_f32 v1, s14, v1")
    for i in range(8): a("v_fma_f32 v%d, v%d, s14, -v1" % (S[i], S[i]))
    for i in range(8): a("v_exp_f32 v%d, v%d" % (S[i], S[i]))
    a("v_add_f32 v2, v%d, v%d" % (S[0], S[1])); a("v_add_f32 v5, v%d, v%d" % (S[2], S[3]))
    a("v_add_f32 v6, v%d, v%d" % (S[4], S[5])); a("v_add_f32 v7, v%d, v%d" % (S[6], S[7]))
    a("v_add_f32 v2, v2, v5"); a("v_add_f32 v6, v6, v7"); a("v_add_f32 v2, v2, v6")
    for i in range(8): a("v_cvt_pk_bf16_f32 v%d, v%d, v%d" % (S[i], S[i], S[i]))
    for i in range(8): prepA(DR + 4 * i, S[i])
    red45("v_add_f32", 2, 5)
    exec_set(0x101, 0)
    a("ds_write_b32 v4, v2 offset:%d" % LS)
    exec_full()
    stamp(8)
    for i in range(8):
        consume("V%d" % i)
        a("v_mfma_f32_16x16x32_bf16 %s, %s, %s, %s" % (q(ACC), q(DR + 4 * i), q(VR + 4 * i), "0" if i == 0 else q(ACC)))
    stamp(9)
    a("v_lshrrev_b32 v1, 5, v0"); a("v_lshlrev_b32 v1, 9, v1"); a("v_and_b32 v2, 15, v0"); a("v_lshl_add_u32 v1, v2, 5, v1")
    a("v_bfe_u32 v2, v0, 4, 1"); a("v_lshl_add_u32 v1, v2, 4, v1"); a("s_lshl_b32 s%d, s%d, 10" % (sT0, sW)); a("v_add_u32 v1, s%d, v1" % sT0)
    a("v_lshrrev_b32 v2, 5, v0"); a("v_lshlrev_b32 v2, 12, v2"); a("v_and_b32 v3, 31, v0"); a("v_lshl_add_u32 v2, v3, 2, v2")
    a("s_lshl_b32 s%d, s%d, 7" % (sT0, sW)); a("s_add_u32 s%d, s%d, %d" % (sT0, sT0, OP)); a("v_add_u32 v2, s%d, v2" % sT0)
    a("v_lshlrev_b32 v3, 3, v3")
    a("s_lshl_b32 s%d, s%d, 4" % (sT0, sH)); a("s_add_u32 s%d, s%d, s%d" % (sT0, sT0, sC)); a("s_lshl_b32 s%d, s%d, 11" % (sT0, sT0))
    a("s_lshl_b32 s%d, s%d, 8" % (sT1, sW)); a("s_add_u32 s%d, s%d, s%d" % (sT0, sT0, sT1)); a("s_add_u32 s%d, s%d, 0x%x" % (sT0, sT0, OS))
    a("ds_write_b128 v1, %s offset:%d" % (q(ACC), OP))
    barrier()
    a("ds_read2st64_b32 v[4:5], v2 offset0:0 offset1:4"); a("ds_read2st64_b32 v[6:7], v2 offset0:8 offset1:12")
    a("s_waitcnt lgkmcnt(0)")
    a("v_add_f32 v4, v4, v5"); a("v_add_f32 v6, v6, v7"); a("v_add_f32 v4, v4, v6")
    a("v_mov_b32 v5, v4"); a("v_permlane32_swap_b32 v4, v5"); a("v_add_f32 v4, v4, v5")
    a("v_mov_b32 v5, v%d" % vTAG)
    exec_set(0xffffffff, 0)
    a.vm_issue("OSst", "buffer_store_dwordx2 v[4:5], v3, %s, s%d offen%s" % (srd("ws"), sT0, pub))
    exec_full()
    stamp(10)
    for rb in final_mfmas_w2():
        pump(names.index("W2_%d" % rb) + W)
    pump(len(seq))
    barrier()
    stamp(11)
    final_mfmas_wo()
    final_publish()
    stamp(12)
    a("s_cmp_lt_u32 s2, %d" % cons0)
    a("s_cbranch_scc1 L_done")
    a("s_sub_u32 s16, s2, %d" % cons0)
    a("v_lshrrev_b32 v1, 2, v0"); a("v_mul_u32_u24 v1, 4608, v1"); a("v_and_b32 v2, 3, v0"); a("v_lshl_add_u32 v1, v2, 4, v1")
    a("s_mul_i32 s17, s%d, %d" % (sW, 32 * 4608)); a("s_lshl_b32 s%d, s16, 6" % sT0); a("s_add_u32 s17, s17, s%d" % sT0)
    a("s_add_u32 s17, s17, 0x%x" % PS); a("s_add_u32 s18, s17, %d" % (16 * 4608))
    def pg():
        a("buffer_load_dwordx4 %s, v1, %s, s17 offen%s" % (q(KR), srd("ws"), pol))
        a("buffer_load_dwordx4 %s, v1, %s, s18 offen%s" % (q(KR + 4), srd("ws"), pol))
    pg()
    a("v_lshlrev_b32 v3, 1, v0"); a("s_lshl_b32 s19, s16, 4")
    a("v_cmp_gt_u32 vcc, 8, v0"); a("v_mov_b32 v4, %s" % OOB); a("v_cndmask_b32 v3, v4, v3, vcc")
    a("buffer_load_ushort v%d, v3, %s, s19 offen" % (X + 8, srd("b2")))
    a("ds_read_b32 v%d, v%d offset:%d" % (X + 9, vZ, ST + 12))
    a("s_waitcnt vmcnt(0)")
    poll([KR + 1, KR + 3, KR + 5, KR + 7], pg)
    stamp(13)
    a("v_add_f32 v%d, v%d, v%d" % (KR, KR, KR + 4)); a("v_add_f32 v%d, v%d, v%d" % (KR + 2, KR + 2, KR + 6))
    a("v_permlane32_swap_b32 v%d, v%d" % (KR, KR + 2)); a("v_add_f32 v%d, v%d, v%d" % (KR, KR, KR + 2))
    a("v_mov_b32 v2, v%d" % KR); a("v_permlane16_swap_b32 v%d, v2" % KR); a("v_add_f32 v%d, v%d, v2" % (KR, KR))
    dppadd("v_add_f32", KR, KR, KR, "row_ror:8"); dppadd("v_add_f32", KR, KR, KR, "row_ror:4")
    a("v_and_b32 v2, 3, v0"); a("v_lshlrev_b32 v2, 3, v2"); a("v_lshrrev_b32 v4, 5, v0"); a("v_lshl_add_u32 v2, v4, 2, v2")
    a("s_lshl_b32 s%d, s%d, 5" % (sT0, sW)); a("v_add_u32 v2, s%d, v2" % sT0)
    exec_set(0xf, 0xf)
    a("ds_write_b32 v2, v%d offset:%d" % (KR, FP))
    exec_full()
    barrier()
    a("s_cmp_eq_u32 s%d, 0" % sW)
    a("s_cbranch_scc0 L_done")
    a("v_and_b32 v2, 7, v0"); a("v_lshlrev_b32 v2, 2, v2")
    for k in range(8): a("ds_read_b32 v%d, v2 offset:%d" % (KR + k, FP + 32 * k))
    a("s_waitcnt lgkmcnt(0)")
    for k in (0, 2, 4, 6): a("v_add_f32 v%d, v%d, v%d" % (KR + k, KR + k, KR + k + 1))
    a("v_add_f32 v%d, v%d, v%d" % (KR, KR, KR + 2)); a("v_add_f32 v%d, v%d, v%d" % (KR + 4, KR + 4, KR + 6)); a("v_add_f32 v%d, v%d, v%d" % (KR, KR, KR + 4))
    a("v_lshlrev_b32 v%d, 16, v%d" % (X + 8, X + 8))
    a("v_fmac_f32 v%d, v%d, v%d" % (KR, X + 8, X + 9))
    a("v_cvt_pk_bf16_f32 v%d, v%d, v%d" % (KR, KR, KR))
    a("buffer_store_short v%d, v3, %s, s19 offen" % (KR, srd("out")))
    a("s_cmp_eq_u32 s16, 0")
    a("s_cbranch_scc0 L_done")
    exec_set(1, 0)
    a("buffer_store_dword v%d, v%d, %s, 0 offen sc1" % (vTAG, vZ, srd("ws")))
    exec_full()
    a("s_branch L_done")

    a.label("L_role1", keep_hist=False)
    a.vm_reset()
    build_srd("g")
    X0, X1, G0, G1 = KR, KR + 4, KR + 8, KR + 12
    a.vm_issue("EP", "buffer_load_dword v%d, v%d, %s, 0 offen sc1" % (X + 1, vZ, srd("ws")))
    a.vm_issue("XP", "buffer_load_dword v%d, v3, %s, s92 offen" % (X, srd("x")))
    a.vm_issue("X0", "buffer_load_dwordx4 %s, v%d, %s, 0 offen" % (q(X0), vOV, srd("x")))
    a.vm_issue("X1", "buffer_load_dwordx4 %s, v%d, %s, 0 offen offset:1024" % (q(X1), vOV, srd("x")))
    a.vm_issue("G0", "buffer_load_dwordx4 %s, v%d, %s, 0 offen" % (q(G0), vOV, srd("g")))
    a.vm_issue("G1", "buffer_load_dwordx4 %s, v%d, %s, 0 offen offset:1024" % (q(G1), vOV, srd("g")))
    for i in range(2):
        a.vm_issue("WQ%d" % i, "buffer_load_dwordx4 %s, v%d, %s, s%d offen%s" % (q(WQ + 4 * i), vOQ, srd("wq"), 93 + i, modw))
    build_srd("b1"); build_srd("w2"); build_srd("wo")
    a("s_mul_i32 s21, s2, 911"); a("s_lshr_b32 s21, s21, 16")
    a("s_mul_i32 s%d, s21, 72" % sT0); a("s_sub_u32 s22, s2, s%d" % sT0)
    w2wo_soff()
    a("v_lshlrev_b32 v1, 1, v0"); a("v_cmp_gt_u32 vcc, 18, v0"); a("v_mov_b32 v2, %s" % OOB); a("v_cndmask_b32 v1, v2, v1, vcc")
    a("s_mul_i32 s%d, s2, 36" % sT0)
    a.vm_issue("B1", "buffer_load_ushort v%d, v1, %s, s%d offen" % (X + 9, srd("b1"), sT0))
    a("s_mov_b32 s14, 0x01000100"); a("s_mov_b32 s15, 0x03020302")
    a.vm_wait("XP")
    read_tag()
    q_phase()
    a.vm_wait("G1")
    a("s_mov_b32 s16, 0x3f803f80")
    s1, s2_, s3_ = 1, 2, 3
    for k in range(8):
        xr, gr = X0 + k, G0 + k
        a("v_dot2_f32_bf16 v%d, v%d, s16, %s" % (s1, xr, "0" if k == 0 else "v%d" % s1))
        a("v_dot2_f32_bf16 v%d, v%d, v%d, %s" % (s2_, xr, xr, "0" if k == 0 else "v%d" % s2_))
        a("v_dot2_f32_bf16 v%d, v%d, v%d, %s" % (s3_, xr, gr, "0" if k == 0 else "v%d" % s3_))
    a("ds_write_b128 v%d, %s offset:%d" % (vOV, q(X0), XS))
    exec_set(0xff, 0)
    a("ds_write_b128 v%d, %s offset:%d" % (vOV, q(X1), XS + 1024))
    exec_full()
    a("v_permlane32_swap_b32 v1, v2"); a("v_add_f32 v1, v1, v2")
    a("v_mov_b32 v4, v3"); a("v_permlane32_swap_b32 v3, v4"); a("v_add_f32 v3, v3, v4")
    a("v_permlane16_swap_b32 v1, v3"); a("v_add_f32 v1, v1, v3")
    for c in ("row_ror:8", "row_ror:4", "row_ror:2", "row_ror:1"): dppadd("v_add_f32", 1, 1, 1, c)
    a("v_readlane_b32 s16, v1, 0"); a("v_readlane_b32 s17, v1, 16"); a("v_readlane_b32 s18, v1, 32")
    a("s_mov_b32 s19, %s" % flit(1.0 / 576.0))
    a("v_mov_b32 v1, s16"); a("v_mul_f32 v1, s19, v1")
    a("v_mov_b32 v2, s18"); a("v_mul_f32 v2, s19, v2")
    a("v_fma_f32 v2, -v1, v1, v2")
    a("v_add_f32 v2, %s, v2" % flit(1e-5)); a("v_rsq_f32 v2, v2")
    a("v_mov_b32 v3, s17"); a("v_mul_f32 v3, %s, v3" % flit(-LOG2E)); a("v_exp_f32 v3, v3"); a("v_add_f32 v3, 1.0, v3"); a("v_rcp_f32 v3, v3")
    a("v_sub_f32 v4, 1.0, v3")
    a("v_mov_b32 v%d, v1" % ACC2); a("v_mov_b32 v%d, v2" % (ACC2 + 1)); a("v_mov_b32 v%d, v3" % (ACC2 + 2)); a("v_mov_b32 v%d, v4" % (ACC2 + 3))
    exec_set(1, 0)
    a("ds_write_b128 v%d, %s offset:%d" % (vZ, q(ACC2), ST))
    exec_full()
    a.vm_wait("WQ0")
    a("v_mfma_f32_16x16x32_bf16 %s, %s, %s, 0" % (q(ACC), q(DR), q(WQ)))
    a.vm_wait("WQ1")
    stamp(1)
    a("v_mfma_f32_16x16x32_bf16 %s, %s, %s, %s" % (q(ACC), q(DR + 4), q(WQ + 4), q(ACC)))
    useful_exec()
    a("ds_write_b128 v%d, %s offset:%d" % (vLP, q(ACC), QP))
    exec_full()
    barrier()
    stamp(2)
    def reduce_rows(first, n):
        a("v_lshlrev_b32 v1, 2, v0")
        for k in range(0, n, 2): a("ds_read2st64_b32 v[%d:%d], v1 offset0:%d offset1:%d" % (DR + k, DR + k + 1, first + k, first + k + 1))
        a("s_waitcnt lgkmcnt(0)")
        m = n
        cur = [DR + k for k in range(n)]
        while len(cur) > 1:
            nxt = []
            for k in range(0, len(cur) - 1, 2):
                a("v_add_f32 v%d, v%d, v%d" % (cur[k], cur[k], cur[k + 1])); nxt.append(cur[k])
            if len(cur) % 2: nxt.append(cur[-1])
            cur = nxt
        a("v_mov_b32 v4, v%d" % cur[0]); a("v_mov_b32 v5, v%d" % vTAG)
    reduce_rows(0, 18)
    a("v_lshlrev_b32 v3, 3, v0")
    a("s_lshl_b32 s%d, s%d, 13" % (sT0, sH)); a("s_lshl_b32 s%d, s%d, 11" % (sT1, sRB)); a("s_add_u32 s%d, s%d, s%d" % (sT0, sT0, sT1))
    a("s_lshl_b32 s%d, s%d, 9" % (sT1, sCB)); a("s_add_u32 s%d, s%d, s%d" % (sT0, sT0, sT1)); a("s_add_u32 s%d, s%d, 0x%x" % (sT0, sT0, QS))
    a.vm_issue("QSst", "buffer_store_dwordx2 v[4:5], v3, %s, s%d offen%s" % (srd("ws"), sT0, pub))
    stamp(14)
    barrier()
    reduce_rows(18, 16)
    a("v_lshlrev_b32 v3, 3, v0")
    a("s_cmp_lt_u32 s21, 3")
    a("s_cbranch_scc0 L_nohs")
    a("s_mul_i32 s%d, s21, 36864" % sT0); a("s_lshl_b32 s%d, s22, 9" % sT1); a("s_add_u32 s%d, s%d, s%d" % (sT0, sT0, sT1)); a("s_add_u32 s%d, s%d, 0x%x" % (sT0, sT0, HS))
    a("buffer_store_dwordx2 v[4:5], v3, %s, s%d offen%s" % (srd("ws"), sT0, pub))
    a.label("L_nohs")
    stamp(3)
    barrier()
    barrier()
    stamp(7)
    a("v_lshlrev_b32 v1, 3, v0"); a("v_cmp_gt_u32 vcc, 18, v0"); a("v_mov_b32 v2, %s" % OOB); a("v_cndmask_b32 v%d, v2, v1, vcc" % (X + 8))
    a("s_mul_i32 s16, s2, 144"); a("s_add_u32 s16, s16, 0x%x" % HS); a("s_add_u32 s17, s16, 36864"); a("s_add_u32 s18, s17, 36864")
    def hg():
        for k in range(3): a("buffer_load_dwordx2 v[%d:%d], v%d, %s, s%d offen%s" % (KR + 2 * k, KR + 2 * k + 1, X + 8, srd("ws"), 16 + k, pol))
    hg()
    a("s_waitcnt vmcnt(0)"); a.vm_reset()
    poll([KR + 1, KR + 3, KR + 5], hg, mask=(1 << 18) - 1)
    for i in range(3): a.vm_issue("W2_%d" % i, ld_w2(i))
    for i in range(2): a.vm_issue("WO_%d" % i, ld_wo(i))
    a("ds_read_b128 %s, v%d offset:%d" % (q(ACC2), vZ, ST))
    a("v_add_f32 v1, v%d, v%d" % (KR, KR + 2)); a("v_add_f32 v1, v1, v%d" % (KR + 4))
    a("v_lshlrev_b32 v2, 16, v%d" % (X + 9)); a("v_add_f32 v1, v1, v2")
    c1 = -2.0 * LOG2E * math.sqrt(2.0 / math.pi)
    a("v_mul_f32 v2, v1, v1"); a("v_mov_b32 v3, %s" % flit(c1)); a("v_fmac_f32 v3, %s, v2" % flit(c1 * 0.044715))
    a("v_mul_f32 v3, v3, v1"); a("v_exp_f32 v3, v3"); a("v_add_f32 v3, 1.0, v3"); a("v_rcp_f32 v3, v3")
    a("v_mul_f32 v1, v1, v3")
    a("s_waitcnt lgkmcnt(0)")
    a("v_mul_f32 v1, v1, v%d" % (ACC2 + 3))
    a("v_cvt_pk_bf16_f32 v1, v1, v1")
    a("v_lshlrev_b32 v2, 2, v0")
    exec_set((1 << 24) - 1, 0)
    a("ds_write_b32 v2, v1 offset:%d" % HB)
    exec_full()
    stamp(8)
    barrier()
    stamp(9)
    a("v_and_b32 v1, 1, v0"); a("v_lshlrev_b32 v2, 5, v1")
    a("ds_read_b128 %s, v2 offset:%d" % (q(DR), MX)); a("ds_read_b128 %s, v2 offset:%d" % (q(DR + 4), MX + 16))
    a("ds_read_b128 %s, v2 offset:%d" % (q(DR + 8), LS)); a("ds_read_b128 %s, v2 offset:%d" % (q(DR + 12), LS + 16))
    a("v_lshlrev_b32 v3, 4, v1")
    a("s_lshl_b32 s%d, s%d, 4" % (sT0, sH)); a("s_add_u32 s%d, s%d, s%d" % (sT0, sT0, sC)); a("s_lshl_b32 s%d, s%d, 5" % (sT0, sT0)); a("s_add_u32 s%d, s%d, 0x%x" % (sT0, sT0, ML))
    a("s_waitcnt lgkmcnt(0)")
    a("v_max3_f32 v4, v%d, v%d, v%d" % (DR, DR + 1, DR + 2)); a("v_max3_f32 v5, v%d, v%d, v%d" % (DR + 3, DR + 4, DR + 5))
    a("v_max3_f32 v4, v4, v%d, v%d" % (DR + 6, DR + 7)); a("v_max_f32 v4, v4, v5")
    a("v_mul_f32 v%d, %s, v4" % (X, flit(CS)))
    for k in (8, 10, 12, 14): a("v_add_f32 v%d, v%d, v%d" % (DR + k, DR + k, DR + k + 1))
    a("v_add_f32 v%d, v%d, v%d" % (DR + 8, DR + 8, DR + 10)); a("v_add_f32 v%d, v%d, v%d" % (DR + 12, DR + 12, DR + 14))
    a("v_add_f32 v%d, v%d, v%d" % (X + 2, DR + 8, DR + 12))
    a("v_mov_b32 v%d, v%d" % (X + 1, vTAG)); a("v_mov_b32 v%d, v%d" % (X + 3, vTAG))
    exec_set(3, 0)
    a.vm_issue("MLst", "buffer_store_dwordx4 %s, v3, %s, s%d offen%s" % (q(X), srd("ws"), sT0, pub))
    exec_full()
    a("v_lshlrev_b32 v1, 11, v%d" % vRow); a("v_and_b32 v2, 7, v0"); a("v_lshl_add_u32 v%d, v2, 4, v1" % (X + 8))
    a("v_lshlrev_b32 v%d, 5, v%d" % (X + 9, vRow))
    a("s_lshl_b32 s16, s%d, 15" % sH); a("s_lshl_b32 s%d, s%d, 7" % (sT0, sC)); a("s_add_u32 s16, s16, s%d" % sT0); a("s_add_u32 s16, s16, 0x%x" % OS)
    a("s_add_u32 s17, s16, 16384")
    a("s_lshl_b32 s18, s%d, 9" % sH); a("s_lshr_b32 s%d, s%d, 3" % (sT0, sC)); a("s_lshl_b32 s%d, s%d, 4" % (sT0, sT0)); a("s_add_u32 s18, s18, s%d" % sT0)
    a("s_add_u32 s18, s18, 0x%x" % ML)
    O0, O1, M0, M1 = VR, VR + 4, VR + 8, VR + 12
    og_txt = ["buffer_load_dwordx4 %s, v%d, %s, s16 offen%s" % (q(O0), X + 8, srd("ws"), pol),
              "buffer_load_dwordx4 %s, v%d, %s, s17 offen%s" % (q(O1), X + 8, srd("ws"), pol),
              "buffer_load_dwordx4 %s, v%d, %s, s18 offen%s" % (q(M0), X + 9, srd("ws"), pol),
              "buffer_load_dwordx4 %s, v%d, %s, s18 offen offset:256%s" % (q(M1), X + 9, srd("ws"), pol)]
    for k, t in enumerate(og_txt): a.vm_issue("OG%d" % k, t)
    for rb in final_mfmas_w2(): pass
    a.vm_wait("OG3")
    stamp(10)
    def og():
        for t in og_txt: a(t)
    poll([O0 + 1, O0 + 3, O1 + 1, O1 + 3, M0 + 1, M0 + 3, M1 + 1, M1 + 3], og)
    a.vm_reset()
    stamp(15)
    a("v_max_f32 v1, v%d, v%d" % (M0, M1))
    dppadd("v_max_f32", 1, 1, 1, "row_ror:8")
    red45("v_max_f32", 1, 2)
    a("v_sub_f32 v2, v%d, v1" % M0); a("v_sub_f32 v3, v%d, v1" % M1); a("v_exp_f32 v2, v2"); a("v_exp_f32 v3, v3")
    a("v_mul_f32 v4, v2, v%d" % (M0 + 2)); a("v_fmac_f32 v4, v3, v%d" % (M1 + 2))
    a("v_mul_f32 v5, v2, v%d" % O0); a("v_fmac_f32 v5, v3, v%d" % O1)
    a("v_mul_f32 v6, v2, v%d" % (O0 + 2)); a("v_fmac_f32 v6, v3, v%d" % (O1 + 2))
    for v in (4, 5, 6): dppadd("v_add_f32", v, v, v, "row_ror:8")
    a("v_permlane32_swap_b32 v5, v6"); a("v_add_f32 v5, v5, v6")
    a("v_mov_b32 v7, v4"); a("v_permlane32_swap_b32 v4, v7"); a("v_add_f32 v4, v4, v7")
    a("v_mov_b32 v7, v5"); a("v_permlane16_swap_b32 v5, v7"); a("v_add_f32 v5, v5, v7")
    a("v_mov_b32 v7, v4"); a("v_permlane16_swap_b32 v4, v7"); a("v_add_f32 v4, v4, v7")
    a("v_rcp_f32 v4, v4")
    a("v_mul_f32 v5, v5, v%d" % (ACC2 + 2))
    a("v_mul_f32 v5, v5, v4")
    a("v_cvt_pk_bf16_f32 v5, v5, v5")
    a("v_and_b32 v1, 7, v0"); a("v_lshlrev_b32 v1, 3, v1"); a("v_lshrrev_b32 v2, 5, v0"); a("v_lshl_add_u32 v1, v2, 2, v1")
    exec_set(0xff, 0xff)
    a("ds_write_b32 v1, v5 offset:%d" % OB)
    exec_full()
    barrier()
    stamp(11)
    final_mfmas_wo()
    final_publish()
    stamp(12)
    a("s_cmp_lt_u32 s2, %d" % cons0)
    a("s_cbranch_scc1 L_done")
    barrier()
    a.label("L_done", keep_hist=False)
    if stamps:
        a("s_memrealtime s[98:99]"); a("s_waitcnt lgkmcnt(0)"); a("v_writelane_b32 v%d, s98, 20" % vST)
        a("s_lshl_b32 s10, s2, 4"); a("s_add_u32 s10, s10, s%d" % sW); a("s_lshl_b32 s10, s10, 8"); a("s_add_u32 s10, s10, 0x%x" % STAMP)
        a("v_lshlrev_b32 v1, 2, v0")
        a("buffer_store_dword v%d, v1, %s, s10 offen" % (vST, srd("ws")))
    a.label("L_end", keep_hist=False)
    a("s_endpgm")
    hdr = "; gated attention + channel MLP decode step, one persistent launch (256 workgroups x 9 waves)\n"
    return wrap(a.text(), 256, 576, LDS_BYTES, 160, extra_header=hdr), a.nops_added

if __name__ == "__main__":
    t, n = gen()
    open("d1.s", "w").write(t)
    t, n = gen(stamps=True)
    open("d1_st.s", "w").write(t)
    print("nops", n)
```
